```python
import torch

def _softmax(x, axis=-1):
    return torch.softmax(x, dim=axis)
def _gelu(x):
    return torch.nn.functional.gelu(x, approximate="tanh")
def _silu(x):
    return torch.nn.functional.silu(x)
def _sigmoid(x):
    return torch.sigmoid(x)
def _layernorm(x, axis=-1, eps=1e-5):
    m = x.mean(dim=axis, keepdim=True)
    v = x.var(dim=axis, keepdim=True, unbiased=False)
    return (x - m) / torch.sqrt(v + eps)
def _scatter_add(tgt, idx, src, axis=0):
    return tgt.clone().index_add_(axis, idx, src)
def _segment_sum(src, seg, n):
    out = torch.zeros((n,) + src.shape[1:], dtype=src.dtype)
    return out.index_add_(0, seg, src)
def _pad(x, pw):
    flat = tuple(v for pair in reversed(pw) for v in pair)
    return torch.nn.functional.pad(x, flat)

kernel_name = 'gated_mix__sliding_local_dilated__softmax_full_mha__prompt'

def setup_inputs():

    _w = (lambda a: (lambda t: t.to(torch.bfloat16) if t.is_floating_point() else t)(torch.as_tensor(a)))
    def _A_setup():
        B, S, D = 1, 2048, 576
        return {
            "x": _w((lambda *s: torch.randn(*s, dtype=torch.bfloat16) * 0.05)(B, S, D)),
            "wqkv": _w((lambda *s: torch.randn(*s, dtype=torch.bfloat16) * 3.2)(D, 3 * D)),
            "wo": _w((lambda *s: torch.randn(*s, dtype=torch.bfloat16) * 0.1)(D, D)),
        }
    _A_in = _A_setup()

    def _B_setup():
        B, S, D = 1, 2048, 576
        return {
            "x": _w((lambda *s: torch.randn(*s, dtype=torch.bfloat16) * 0.05)(B, S, D)),
            "wqkv": _w((lambda *s: torch.randn(*s, dtype=torch.bfloat16) * 1.6)(D, 3 * D)),
            "wo": _w((lambda *s: torch.randn(*s, dtype=torch.bfloat16) * 0.2)(D, D)),
        }
    _B_in = _B_setup()

    return {
        "A_x": _A_in["x"],
        "A_wqkv": _A_in["wqkv"],
        "A_wo": _A_in["wo"],
        "B_x": _B_in["x"],
        "B_wqkv": _B_in["wqkv"],
        "B_wo": _B_in["wo"],
        "gate_w": _w((lambda *s: torch.randn(*s, dtype=torch.bfloat16) * 0.05)(576) * 16.0),
    }

def reference(A_x, A_wqkv, A_wo, B_x, B_wqkv, B_wo, gate_w):
    def _A_ref(x, wqkv, wo):
        B, S, D = x.shape
        H = 32; Dh = D // H
        W, dil = 8, 2
        qkv = (lambda x, *d: x.permute(*d))((x @ wqkv).reshape(B, S, 3, H, Dh), 2, 0, 3, 1, 4)
        q, k, v = qkv[0], qkv[1], qkv[2]
        scale = Dh ** -0.5
        pos = torch.arange(S)
        off = torch.arange(W) * dil
        idx = pos[:, None] - off[None, :]
        mask = idx >= 0
        idx_c = torch.where(mask, idx, 0).reshape(-1)
        kg = k[:, :, idx_c, :].reshape(B, H, S, W, Dh)
        vg = v[:, :, idx_c, :].reshape(B, H, S, W, Dh)
        logits = torch.einsum("bhsd,bhswd->bhsw", q, kg) * scale
        logits = torch.where(mask[None, None, :, :], logits, -1e9)
        attn = _softmax(logits, axis=-1)
        o = torch.einsum("bhsw,bhswd->bhsd", attn, vg)
        return (lambda x, *d: x.permute(*d))(o, 0, 2, 1, 3).reshape(B, S, D) @ wo

    def _B_ref(x, wqkv, wo):
        B, S, D = x.shape
        H = 32; Dh = D // H
        qkv = (lambda x, *d: x.permute(*d))((x @ wqkv).reshape(B, S, 3, H, Dh), 2, 0, 3, 1, 4)
        q, k, v = qkv[0], qkv[1], qkv[2]
        scale = Dh ** -0.5
        scores = torch.einsum("bhqd,bhkd->bhqk", q, k) * scale
        p = _softmax(scores, axis=-1)
        o = torch.einsum("bhqk,bhkd->bhqd", p, v)
        return (lambda x, *d: x.permute(*d))(o, 0, 2, 1, 3).reshape(B, S, D) @ wo

    x = A_x
    g = _sigmoid((x * gate_w).sum(-1, keepdims=True))
    a = _A_ref(x, A_wqkv, A_wo)
    b = _B_ref(x, B_wqkv, B_wo)
    return g * a + (1 - g) * b
```

```python
class Asm:
    def __init__(self):
        self.lines=[]
        self.uid=0
    def __call__(self, s):
        for l in s.split("\n"):
            l=l.strip()
            if l:
                if l.endswith(":") or l.startswith("."): self.lines.append(l)
                else: self.lines.append("    "+l)
        return self
    def label(self, base):
        self.uid+=1
        return f"L_{base}_{self.uid}"
    def text(self):
        return "\n".join(self.lines)+"\n"

def vr(a,n=1):
    return f"v{a}" if n==1 else f"v[{a}:{a+n-1}]"
def sr(a,n=1):
    return f"s{a}" if n==1 else f"s[{a}:{a+n-1}]"

def kernel_header(name):
    return f""".text
.globl {name}
.p2align 8
.type {name},@function
{name}:
"""
def kernel_desc(name, vgpr, sgpr=102, accum=None):
    acc = accum if accum is not None else min(256,(vgpr+3)//4*4)
    return f""".section .rodata,"a"
.p2align 6
.amdhsa_kernel {name}
  .amdhsa_next_free_vgpr {vgpr}
  .amdhsa_next_free_sgpr {sgpr}
  .amdhsa_accum_offset {acc}
  .amdhsa_group_segment_fixed_size 0
  .amdhsa_kernarg_size 80
  .amdhsa_user_sgpr_count 2
  .amdhsa_user_sgpr_kernarg_segment_ptr 1
  .amdhsa_system_sgpr_workgroup_id_x 1
.end_amdhsa_kernel
"""
HEADER_COMMENT = """; Kernarg layout (80 bytes, ptrs only, base s[0:1]):
"""
```

```python
from asmlib import *
NAME="gated_mix__sliding_local_dilated__softmax_full_mha__prompt"
G_OFF=0
QB1=8192
QB2=QB1+32*65536
KVB=QB2+32*8192
HS_KV=155648; ST=19456
AB=KVB+32*HS_KV
HS_A=229376; TS_A=3584
OB=AB+32*HS_A
O_BR=64*36864; O_TT=36864
WP=OB+2*O_BR
WP_CG=36*2304
WS_END=WP+16*WP_CG
A_K1=0; A_V1=1024; A_V2=2048; A_K2=2304; A_Q1=2432; A_Q2=3456
S_K1=0; S_V=8192; S_K2=18432
X_BYTES=2048*1152; W_BYTES=576*3456; WO_BYTES=576*1152; OUT_BYTES=2048*1152
BIG=0x10000000
import math, struct
QSCALE=18**-0.5*math.log2(math.e)
def f2u(f): return struct.unpack('<I',struct.pack('<f',f))[0]
def srd(a,s,size,lo=None):
    a(f"s_mov_b32 s{s+2}, {size}\ns_mov_b32 s{s+3}, 0x00020000")

class LgkmQ:
    def __init__(s,a): s.a=a; s.q=[]
    def issue(s,txt,tag): s.a(txt); s.q.append(tag)
    def need(s,tags):
        idx=[i for i,t in enumerate(s.q) if t in tags]
        if not idx: return
        last=max(idx); n=len(s.q)-1-last
        assert n<=15, n
        s.a(f"s_waitcnt lgkmcnt({n})"); s.q=s.q[last+1:]
    def clear(s): s.q=[]

import os
TIMING=int(os.environ.get("TIMING","0"))
TS_OFF=WS_END
def ts(a,i,base=80):
    if TIMING:
        a(f"s_memtime s[{base+2*i}:{base+2*i+1}]\ns_waitcnt lgkmcnt(0)")
def ts_real(a,i,base=80):
    if TIMING:
        a(f"s_memrealtime s[{base+2*i}:{base+2*i+1}]\ns_waitcnt lgkmcnt(0)")
def ts_dump(a,n,sW,wsrd=12,base=80,area=0):
    if not TIMING: return
    a(f"""s_waitcnt vmcnt(0)
    s_memtime s[{base+2*n}:{base+2*n+1}]
    s_memrealtime s[{base+2*n+2}:{base+2*n+3}]
    s_waitcnt lgkmcnt(0)
    s_lshl_b32 s98, s2, 4
    s_add_u32 s98, s98, s{sW}
    s_lshl_b32 s98, s98, 7
    s_add_u32 s98, s98, {TS_OFF+area*524288}
    s_mov_b32 s{wsrd+2}, {TS_OFF+4*524288}
    v_mov_b32 v3, 0""")
    for i in range(n+2):
        a(f"""v_mov_b32 v0, s{base+2*i}
        v_mov_b32 v1, s{base+2*i+1}
        buffer_store_dwordx2 v[0:1], v3, s[{wsrd}:{wsrd+3}], s98 offen offset:{8*i}
        s_nop 1""")
    a("s_waitcnt vmcnt(0)")
```

```python
import re
REG=re.compile(r'^(v|s|a)(\d+)$'); RNG=re.compile(r'^(v|s|a)\[(\d+):(\d+)\]$')
def regs(op):
    op=op.strip()
    neg=op.lstrip('-').strip('|')
    m=REG.match(neg)
    if m: return {(m.group(1),int(m.group(2)))}
    m=RNG.match(neg)
    if m: return {(m.group(1),i) for i in range(int(m.group(2)),int(m.group(3))+1)}
    if neg=='vcc': return {('s','vcc')}
    if neg in('vcc_lo','vcc_hi'): return {('s','vcc')}
    if neg=='exec': return {('s','exec')}
    if neg=='m0': return {('s','m0')}
    return set()
TRANS=('v_exp_','v_log_','v_rcp_','v_rsq_','v_sqrt_','v_sin_','v_cos_')
def passes(op):
    if '32x32' in op: return 8
    if '16x16' in op: return 4
    raise Exception(op)
class I:
    def __init__(s,line):
        s.line=line
        t=line.split(';')[0].strip()
        s.txt=t
        s.label = t.endswith(':')
        s.dirv = t.startswith('.')
        s.empty = (t=='')
        s.op=''; s.w=set(); s.r=set(); s.kind='other'; s.states=1
        if s.label or s.dirv or s.empty:
            s.states=0; return
        p=t.split(None,1); s.op=p[0]; rest=p[1] if len(p)>1 else ''
        ops=[o.strip() for o in re.split(r',(?![^\[]*\])',rest)] if rest else []
        mods=''
        if ops:
            q=ops[-1].split(None,1)
            ops[-1]=q[0]
            if len(q)>1: mods=q[1]
        s.ops=ops; s.mods=mods
        op=s.op
        if op.startswith('v_mfma') or op.startswith('v_smfmac'):
            s.kind='mfma'; s.D=regs(ops[0]); s.A=regs(ops[1]); s.B=regs(ops[2]); s.C=regs(ops[3])
            s.w=s.D; s.r=s.A|s.B|s.C; s.p=passes(op)
        elif op.startswith('v_'):
            s.kind='valu'
            if op=='v_nop': return
            if op.startswith('v_permlane'):
                s.w=regs(ops[0])|regs(ops[1]); s.r=set(s.w)
            elif op.startswith('v_cmp'):
                s.w=regs(ops[0]); s.r=set().union(*[regs(o) for o in ops[1:]])
            else:
                s.w=regs(ops[0]); s.r=set().union(*[regs(o) for o in ops[1:]]) if len(ops)>1 else set()
                if op.startswith(('v_fmac','v_mac','v_dot2c','v_writelane')) or 'UNUSED_PRESERVE' in mods: s.r|=s.w
                if op.startswith(('v_add_co','v_sub_co','v_addc_co','v_subb_co')): s.w|=regs(ops[1])
            s.trans=op.startswith(TRANS)
            s.dpp=('row_' in mods or 'quad_perm' in mods or 'wave_' in mods or 'dpp' in op)
            s.sdwa=('sdwa' in op or 'dst_sel' in mods or 'op_sel' in mods)
            s.dot=op.startswith('v_dot')
        elif op.startswith('ds_'):
            s.kind='ds'
            if op.startswith(('ds_read','ds_bpermute','ds_permute','ds_swizzle')):
                s.w=regs(ops[0]); s.r=set().union(*[regs(o) for o in ops[1:]])
            else:
                s.r=set().union(*[regs(o) for o in ops])
        elif op.startswith(('buffer_','global_')):
            s.kind='vmem'
            lds=(' lds' in ' '+mods) or ('_lds_' in op)
            s.lds=lds
            if 'load' in op and not lds:
                s.w=regs(ops[0]); s.r=set().union(*[regs(o) for o in ops[1:]])
            elif 'atomic' in op and ('sc0' in mods):
                s.w=regs(ops[0]); s.r=set().union(*[regs(o) for o in ops])
            else:
                s.r=set().union(*[regs(o) for o in ops])
            s.wide= ('store' in op and ('x3' in op or 'x4' in op))
            s.data=regs(ops[0]) if 'store' in op and op.startswith('buffer_') else (regs(ops[1]) if 'store' in op else set())
        elif op.startswith('s_'):
            s.kind='salu'
            if op=='s_nop': s.states=int(ops[0],0)+1
            elif op.startswith(('s_waitcnt','s_barrier','s_branch','s_cbranch','s_endpgm','s_setprio','s_sleep')): pass
            elif op.startswith(('s_cmp','s_bitcmp')): s.r=set().union(*[regs(o) for o in ops])
            else:
                s.w=regs(ops[0]) if ops else set(); s.r=set().union(*[regs(o) for o in ops[1:]]) if len(ops)>1 else set()
                if 'saveexec' in op: s.w|={('s','exec')}
def vg(x): return {r for r in x if r[0]=='v'}
def sg(x): return {r for r in x if r[0]=='s'}
def need(p,c):
    n=0
    if p.kind=='mfma':
        big=p.p==8
        if c.kind=='mfma':
            if c.C & p.D:
                if c.C==p.D and c.p==p.p: pass
                else: n=max(n,10 if big else 6)
            if (c.A|c.B)&p.D: n=max(n,12 if big else 8)
            if c.D & p.D and not (c.C==p.D): n=max(n,12 if big else 8)
        else:
            if (c.r|c.w)&p.D: n=max(n,12 if big else 8)
            if c.kind=='valu' and (c.w & p.C): n=max(n,7 if big else 3)
    if p.kind=='valu':
        pw=vg(p.w); ps=sg(p.w)
        if c.kind=='mfma' and (c.r&pw): n=max(n,2)
        if c.kind=='valu':
            if c.op.startswith(('v_readlane','v_readfirstlane')):
                if regs(c.ops[1])&pw: n=max(n,1)
                if c.op.startswith('v_readlane') and regs(c.ops[2])&ps: n=max(n,4)
            if c.op.startswith('v_writelane') and regs(c.ops[2])&ps: n=max(n,4)
            if c.op.startswith('v_permlane') and (c.r&pw): n=max(n,2)
            if c.dpp and (c.r&pw): n=max(n,2)
            if c.r&ps: n=max(n,2)
            if p.trans and not c.trans and (c.r&pw): n=max(n,1)
            if p.sdwa and ((c.r|c.w)&pw): n=max(n,1)
            if p.dot and ((c.r|c.w)&pw):
                if c.op==p.op and len(c.ops)>3 and regs(c.ops[3])&pw and not ((regs(c.ops[1])|regs(c.ops[2]))&pw): pass
                else: n=max(n,3)
            if ('s','exec') in ps and c.dpp: n=max(n,5)
        if c.kind=='mfma' and ('s','exec') in ps: n=max(n,4)
        if c.kind=='vmem' and (c.r&ps): n=max(n,5)
    if p.kind=='vmem' and p.wide:
        if c.w & p.data: n=max(n,2 if c.kind=='valu' else 1)
    if p.kind=='salu' and ('s','m0') in p.w and c.kind=='vmem' and c.lds: n=max(n,1)
    return n
def process(text, fix=True, W=22):
    lines=text.split('\n')
    ins=[I(l) for l in lines]
    out=[]; hist=[]
    ninserted=0
    def required(hist,c):
        dist=0; req=0
        for p in reversed(hist):
            k=need(p,c)-dist
            if k>req: req=k
            dist+=p.states
            if dist>W: break
        return req
    for c in ins:
        if c.states==0 and (c.label or c.dirv or c.empty):
            out.append(c); continue
        r=required(hist,c)
        if r>0:
            if fix:
                nop=I(f"    s_nop {r-1}")
                out.append(nop); hist.append(nop); ninserted+=1
            else: print("HAZARD",r,c.line)
        out.append(c); hist.append(c)
        if c.op in('s_branch','s_endpgm'): hist=[]
    labels={o.txt[:-1]:i for i,o in enumerate(out) if o.label}
    bad=0
    for i,o in enumerate(out):
        if o.op.startswith(('s_cbranch','s_branch')):
            tgt=o.ops[0]
            if tgt not in labels: continue
            h=[x for x in out[max(0,i-60):i+1] if x.states>0]
            for j in range(len(h)-2,-1,-1):
                if h[j].op in('s_branch','s_endpgm'): h=h[j+1:]; break
            j=labels[tgt]; cnt=0; hh=list(h)
            while j<len(out) and cnt<W:
                x=out[j]; j+=1
                if x.states==0: continue
                r=required(hh,x)
                if r>0:
                    print(f"BRANCH-HAZARD need {r} more: {o.txt} -> {x.txt}"); bad+=1
                hh.append(x); cnt+=x.states
                if x.op in('s_branch','s_endpgm'): break
    return '\n'.join(o.line for o in out), ninserted, bad
```

```python
import sys, importlib
from gen_common import *
import hazard
def build(phases, out):
    hdr=HEADER_COMMENT
    body='.amdgcn_target "amdgcn-amd-amdhsa--gfx950"\n'
    for ph in phases:
        mod=importlib.import_module("gen_"+ph)
        kname=f"{ph}_kernel"
        r=getattr(mod,ph)(kname)
        txt,vg,lds=r[:3]
        grid=r[3] if len(r)>3 else 256
        block=r[4] if len(r)>4 else 512
        txt,n,bad=hazard.process(txt)
        print(f"{ph}: {txt.count(chr(10))} lines, {n} nops inserted, {bad} branch hazards, vgpr {vg}, lds {lds}")
        hdr+=f"; @launch kernel={kname} grid=({grid},1,1) block=({block},1,1) lds={lds}\n"
        body+=kernel_header(kname)+txt+"\n"+kernel_desc(kname,vg)
    open(out,"w").write(hdr+body)
if __name__=="__main__":
    phases=sys.argv[2].split(",")
    build(phases, sys.argv[1])
```
